```python
import torch

def _softmax(x, axis=-1):
    return torch.softmax(x, dim=axis)
def _gelu(x):
    return torch.nn.functional.gelu(x, approximate="tanh")
def _silu(x):
    return torch.nn.functional.silu(x)
def _sigmoid(x):
    return torch.sigmoid(x)
def _layernorm(x, axis=-1, eps=1e-5):
    m = x.mean(dim=axis, keepdim=True)
    v = x.var(dim=axis, keepdim=True, unbiased=False)
    return (x - m) / torch.sqrt(v + eps)
def _scatter_add(tgt, idx, src, axis=0):
    return tgt.clone().index_add_(axis, idx, src)
def _segment_sum(src, seg, n):
    out = torch.zeros((n,) + src.shape[1:], dtype=src.dtype)
    return out.index_add_(0, seg, src)
def _pad(x, pw):
    flat = tuple(v for pair in reversed(pw) for v in pair)
    return torch.nn.functional.pad(x, flat)

kernel_name = 'gated_mix__sliding_block_cached__glu_gated_swiglu__decode'

def setup_inputs():

    _w = (lambda a: (lambda t: t.to(torch.bfloat16) if t.is_floating_point() else t)(torch.as_tensor(a)))
    def _A_setup():
        B, Sq, D = 1, 1, 640
        Hq, Hkv, Sk, Dh = 32, 32, 32768, 192
        assert Hq % Hkv == 0, (Hq, Hkv)
        return {
            "x": _w((lambda *s: torch.randn(*s, dtype=torch.bfloat16) * 0.05)(B, Sq, D)),
            "k_cache": _w((lambda *s: torch.randn(*s, dtype=torch.bfloat16) * 6.4)(B, Hkv, Sk, Dh)),
            "v_cache": _w((lambda *s: torch.randn(*s, dtype=torch.bfloat16) * 0.05)(B, Hkv, Sk, Dh)),
            "wq": _w((lambda *s: torch.randn(*s, dtype=torch.bfloat16) * 3.2)(D, Hq * Dh) * (D ** -0.5)),
            "wo": _w((lambda *s: torch.randn(*s, dtype=torch.bfloat16) * 0.05)(Hq * Dh, D) * ((Hq * Dh) ** -0.5)),
        }
    _A_in = _A_setup()

    def _B_setup():
        B, S, D, F = 1, 1, 640, 1536
        return {
            "x": _w((lambda *s: torch.randn(*s, dtype=torch.bfloat16) * 0.05)(B, S, D)),
            "w1": _w((lambda *s: torch.randn(*s, dtype=torch.bfloat16) * 0.4)(D, F) * (2.0 / D) ** 0.5),
            "w3": _w((lambda *s: torch.randn(*s, dtype=torch.bfloat16) * 0.4)(D, F) * (2.0 / D) ** 0.5),
            "w2": _w((lambda *s: torch.randn(*s, dtype=torch.bfloat16) * 0.4)(F, D) * (2.0 / F) ** 0.5),
        }
    _B_in = _B_setup()

    return {
        "A_x": _A_in["x"],
        "A_k_cache": _A_in["k_cache"],
        "A_v_cache": _A_in["v_cache"],
        "A_wq": _A_in["wq"],
        "A_wo": _A_in["wo"],
        "B_x": _B_in["x"],
        "B_w1": _B_in["w1"],
        "B_w3": _B_in["w3"],
        "B_w2": _B_in["w2"],
        "gate_w": _w((lambda *s: torch.randn(*s, dtype=torch.bfloat16) * 0.1)(640) * 16.0),
    }

def reference(A_x, A_k_cache, A_v_cache, A_wq, A_wo, B_x, B_w1, B_w3, B_w2, gate_w):
    def _A_ref(x, k_cache, v_cache, wq, wo):
        B, Sq, D = x.shape
        Hq, Dh = 32, 192
        Hkv, Sk = k_cache.shape[1], k_cache.shape[2]
        W = min(4096, max(256, Sk // 4))
        rep = Hq // Hkv
        q = (lambda x, *d: x.permute(*d))((x @ wq).reshape(B, Sq, Hq, Dh), 0, 2, 1, 3)
        k = (lambda x, n, axis: torch.repeat_interleave(x, n, dim=axis))(k_cache[:, :, Sk - W:, :], rep, axis=1)
        v = (lambda x, n, axis: torch.repeat_interleave(x, n, dim=axis))(v_cache[:, :, Sk - W:, :], rep, axis=1)
        scores = torch.einsum("bhqd,bhkd->bhqk", q, k) * (Dh ** -0.5)
        p = _softmax(scores, axis=-1)
        o = torch.einsum("bhqk,bhkd->bhqd", p, v)
        return (lambda x, *d: x.permute(*d))(o, 0, 2, 1, 3).reshape(B, Sq, Hq * Dh) @ wo

    def _B_ref(x, w1, w3, w2):
        gate = torch.einsum("bsd,df->bsf", x, w1)
        up = torch.einsum("bsd,df->bsf", x, w3)
        h = _silu(gate) * up
        out = torch.einsum("bsf,fd->bsd", h, w2)
        return out

    x = A_x
    g = _sigmoid((x * gate_w).sum(-1, keepdims=True))
    a = _A_ref(x, A_k_cache, A_v_cache, A_wq, A_wo)
    b = _B_ref(x, B_w1, B_w3, B_w2)
    return g * a + (1 - g) * b
```

```python
import sys, struct
KN = "gated_mix__sliding_block_cached__glu_gated_swiglu__decode_kernel"
HEADER = open("gated_mix__sliding_block_cached__glu_gated_swiglu__decode.s.ref").read().split("; Override launch")[0]

QO_STRIDE = 1664
FY_BASE = 256*QO_STRIDE
FY_STRIDE = 768
L_CH, L_Y, L_Q, L_HW, L_TAB, L_SYNC = 0, 12288, 20480, 20864, 21120, 21248
L_CNTM, L_MC, L_CNTO, L_CNTY, L_FALL, L_FQ, L_FH, L_G, L_STG = [L_SYNC+4*i for i in range(9)]
LDS_BYTES = L_SYNC + 64
SCALE = 0.10411754907
def fbits(x): return "0x%08x" % struct.unpack("<I", struct.pack("<f", x))[0]

def gen(path, diag=False, opts=None):
    o = dict(kvnt="nt", wnt="nt", burst=1, pads=True, preK=12)
    if opts: o.update(opts)
    L = []
    def A(s): L.append("    " + s if not s.endswith(":") else s)
    def C(s): L.append("    ; " + s)
    def stamp(i):
        if diag: A(f"s_memrealtime s[{80+2*i}:{81+2*i}]")
    lab = [0]
    def newlab(n):
        lab[0] += 1
        return f"L_{n}_{lab[0]}"
    DPP = "row_mask:0xf bank_mask:0xf"
    BC15 = "row_bcast:15 row_mask:0xa bank_mask:0xf"; BC31 = "row_bcast:31 row_mask:0xc bank_mask:0xf"
    sW, sH, sC, sT, sJ, sS, sSPIN = 3, 30, 31, 32, 33, 34, 35
    vL, vOct, vPc, vKV0, vKV1, vZ, vT0, vT1 = 0, 1, 2, 3, 4, 5, 6, 7
    vM, vS, vQ, vK, vV, vX = 8, 12, 16, 28, 76, 124
    pads = []
    def pad():
        if o["pads"]:
            i = len(pads); pads.append(i)
            A(f"L_pad{i}:"); A(f"s_branch L_padret{i}")

    L.append(HEADER.rstrip())
    L.append("; Override launch geometry by editing the next line (default: block=256,")
    L.append(f"; @launch grid=(256,1,1) block=(1024,1,1) lds={LDS_BYTES}")
    L.append('.amdgcn_target "amdgcn-amd-amdhsa--gfx950"')
    L.append(".text"); L.append(f".globl {KN}"); L.append(".p2align 8"); L.append(f".type {KN},@function"); L.append(f"{KN}:")
    if diag:
        for i in range(1, 10): A(f"s_mov_b64 s[{80+2*i}:{81+2*i}], 0")
    stamp(0)
    if o.get("pin"): A("s_memrealtime s[80:81]")
    A("s_cmp_ge_u32 s2, 256"); A("s_cbranch_scc1 L_exit")
    A("s_load_dwordx16 s[4:19], s[0:1], 0")
    A("s_load_dwordx8 s[20:27], s[0:1], 64")
    A("s_load_dwordx2 s[28:29], s[0:1], 96")
    A(f"v_lshrrev_b32 v{vOct}, 6, v0")
    A(f"v_and_b32 v{vL}, 63, v0")
    A(f"v_readfirstlane_b32 s{sW}, v{vOct}")
    A(f"v_lshrrev_b32 v{vOct}, 3, v{vL}")
    A(f"v_and_b32 v{vPc}, 7, v{vL}")
    A(f"v_mul_u32_u24 v{vKV0}, 384, v{vOct}")
    A(f"v_lshl_add_u32 v{vKV0}, v{vPc}, 4, v{vKV0}")
    A(f"v_add_u32 v{vKV1}, 6144, v{vKV0}")
    A(f"v_mov_b32 v{vZ}, 0")
    A(f"s_lshr_b32 s{sH}, s2, 3"); A(f"s_and_b32 s{sC}, s2, 7")
    C("K/V byte offset of this wave's 32 keys -> s39")
    A(f"s_mul_i32 s39, s{sH}, 12582912")
    A(f"s_lshl_b32 s37, s{sC}, 4"); A(f"s_add_u32 s37, s37, s{sW}")
    A(f"s_add_u32 s37, s37, {28672//32}")
    A(f"s_mul_i32 s37, s37, 12288")
    A("s_add_u32 s39, s39, s37")
    C("tail role: t (0..239) -> j,s ; or final role (t>=240: k=t-240)")
    A("s_sub_u32 s37, s2, 224"); A("s_lshr_b32 s38, s37, 1"); A("s_and_b32 s37, s37, 1")
    A("s_lshl_b32 s37, s37, 4"); A("s_add_u32 s38, s38, s37"); A("s_addk_i32 s38, 224")
    A("s_cmpk_lt_u32 s2, 224"); A(f"s_cselect_b32 s{sT}, s2, s38")
    A(f"s_mul_i32 s{sJ}, s{sT}, 6554"); A(f"s_lshr_b32 s{sJ}, s{sJ}, 16")
    A(f"s_mul_i32 s37, s{sJ}, 10"); A(f"s_sub_u32 s{sS}, s{sT}, s37")
    A(f"s_mov_b32 s{sSPIN}, 0x100000")
    C("sparse-operand masks")
    A(f"v_and_b32 v{vT0}, 1, v{vL}"); A(f"v_lshlrev_b32 v{vT0}, 4, v{vT0}")
    A(f"v_mov_b32 v{vT1}, 0xffff"); A(f"v_lshlrev_b32 v{vT0}, v{vT0}, v{vT1}")
    A(f"v_lshrrev_b32 v{vT1}, 1, v{vPc}")
    for t in range(4): A(f"v_cmp_eq_u32 s[{40+2*t}:{41+2*t}], {t}, v{vT1}")
    A(f"s_cmp_ge_u32 s{sW}, 4")
    for t in range(4): A(f"v_cndmask_b32 v{vM+t}, 0, v{vT0}, s[{40+2*t}:{41+2*t}]")
    A("s_cbranch_scc1 L_not03")

    def kvbase():
        A("s_add_u32 s6, s6, s39"); A("s_addc_u32 s7, s7, 0")
        A("s_add_u32 s8, s8, s39"); A("s_addc_u32 s9, s9, 0")
    def kvloads(base, r0, lo=0, hi=12):
        for i in range(lo, hi):
            g, j = divmod(i, 3)
            r = r0 + 4*i
            A(f"global_load_dwordx4 v[{r}:{r+3}], v{vKV0 if g < 2 else vKV1}, s[{base}:{base+1}] offset:{(g&1)*3072 + j*128} {o['kvnt']}")
            if (i+1) % o["burst"] == 0: A("s_nop 0")

    def lds_spin(off, target, b64=False, sleep=2, addr=None, dopad=False):
        l1 = newlab("spin"); l2 = newlab("done"); l0 = newlab("first")
        a = vZ if addr is None else addr
        A(f"s_branch {l0}") if False else None
        A(f"{l1}:")
        A(f"ds_read_b64 v[{vT0}:{vT1}], v{a} offset:{off}" if b64 else f"ds_read_b32 v{vT0}, v{a} offset:{off}")
        A("s_waitcnt lgkmcnt(0)")
        A(f"v_readfirstlane_b32 s36, v{vT0}")
        A(f"s_cmp_eq_u32 s36, {target}"); A(f"s_cbranch_scc1 {l2}")
        A(f"s_sleep {sleep}")
        A(f"s_sub_u32 s{sSPIN}, s{sSPIN}, 1"); A(f"s_cbranch_scc0 {l1}")
        A("s_branch L_end")
        if dopad: pad()
        A(f"{l2}:")

    def lds_setflag(off, val=1):
        A(f"v_mov_b32 v{vT0}, {val}")
        A(f"ds_write_b32 v{vZ}, v{vT0} offset:{off}")

    def poll_head(name):
        A(f"{name}:")
        A(f"s_sub_u32 s{sSPIN}, s{sSPIN}, 16"); A("s_cbranch_scc1 L_end")
    def poll_check(regs, retry):
        regs = list(regs)
        acc = regs.pop(0)
        while regs:
            if len(regs) >= 2: A(f"v_max3_u32 v{vT0}, v{acc}, v{regs.pop(0)}, v{regs.pop(0)}")
            else: A(f"v_max_u32 v{vT0}, v{acc}, v{regs.pop(0)}")
            acc = vT0
        A(f"v_cmp_eq_u32 vcc, -1, v{acc}")
        A(f"s_cbranch_vccnz {retry}")

    C("======== waves 0-3: K loads ahead of the barrier")
    A("s_waitcnt lgkmcnt(0)")
    kvbase()
    A("s_setprio 1")
    kvloads(6, vK)
    A("s_barrier")
    A("s_branch L_Av")

    A("L_not03:")
    A(f"s_cmp_ge_u32 s{sW}, 13"); A("s_cbranch_scc1 L_B13")
    A(f"s_cmp_lt_u32 s{sW}, 8"); A("s_cbranch_scc1 L_w47")
    C("======== W waves: 8..10 wq parts, 11/12 w1/w3 strip")
    A("s_setprio 3")
    A("s_mov_b32 s51, 0x20000")
    A(f"s_cmp_ge_u32 s{sW}, 11"); A("s_cbranch_scc1 L_Wffn")
    A(f"s_mov_b32 s50, {640*12288}"); A("s_movk_i32 s53, 12288")
    A(f"s_mul_i32 s36, s{sC}, 983040"); A(f"s_mul_i32 s37, s{sH}, 384"); A("s_add_u32 s36, s36, s37")
    A(f"s_sub_u32 s38, s{sW}, 8"); A("s_lshl_b32 s37, s38, 7"); A("s_add_u32 s64, s36, s37")
    A(f"v_mul_u32_u24 v{vX}, 122880, v{vOct}")
    A(f"s_mul_i32 s36, s{sC}, 160"); A(f"v_mul_u32_u24 v{vX+1}, 20, v{vOct}")
    A(f"s_mul_i32 s62, s2, {QO_STRIDE}")
    A("s_branch L_Wgo")
    A("L_Wffn:")
    A(f"s_cmpk_ge_u32 s{sT}, 240"); A("s_cbranch_scc1 L_B15")
    A(f"s_mov_b32 s50, {640*3072}"); A("s_movk_i32 s53, 3072")
    A(f"s_mul_i32 s36, s{sS}, {64*3072}"); A(f"s_lshl_b32 s37, s{sJ}, 7"); A("s_add_u32 s64, s36, s37")
    A(f"v_mul_u32_u24 v{vX}, {8*3072}, v{vOct}")
    A(f"s_lshl_b32 s36, s{sS}, 7"); A(f"v_lshlrev_b32 v{vX+1}, 4, v{vOct}")
    A(f"s_mul_i32 s62, s{sT}, {FY_STRIDE}"); A(f"s_sub_u32 s38, s{sW}, 11")
    A(f"s_add_u32 s62, s62, {FY_BASE}")
    A("L_Wgo:")
    A(f"v_add_u32 v{vX+1}, s36, v{vX+1}")
    A(f"v_lshl_add_u32 v{vX}, v{vPc}, 4, v{vX}")
    A(f"v_min_u32 v{vX+2}, {1280-20}, v{vX+1}")
    for k in range(1, 10): A(f"s_add_u32 s{64+k}, s{63+k}, s53")
    A("s_waitcnt lgkmcnt(0)")
    A(f"s_cmp_eq_u32 s{sW}, 11"); A("s_cselect_b64 s[48:49], s[16:17], s[18:19]")
    A(f"s_cmp_lt_u32 s{sW}, 11"); A("s_cselect_b64 s[48:49], s[10:11], s[48:49]")
    A(f"global_load_dwordx4 v[{vQ}:{vQ+3}], v{vX+1}, s[4:5]")
    A(f"global_load_dword v{vQ+4}, v{vX+2}, s[4:5] offset:16")
    for k in range(8):
        A(f"buffer_load_dwordx4 v[{vK+4*k}:{vK+4*k+3}], v{vX}, s[48:51], s{64+k} offen {o['wnt']}")
    A("s_cbranch_scc0 L_W8")
    for k in range(8, 10):
        A(f"buffer_load_dwordx4 v[{vK+4*k}:{vK+4*k+3}], v{vX}, s[48:51], s{64+k} offen {o['wnt']}")
    A("L_W8:")
    A("s_barrier")
    kvbase()
    A("s_lshl_b32 s37, s38, 8"); A("s_add_u32 s62, s62, s37")
    A("s_mov_b32 s54, 0x01000100"); A("s_mov_b32 s55, 0x03020302")
    A("s_waitcnt vmcnt(8)")
    for k in range(10):
        A(f"v_perm_b32 v{vT0}, v{vQ+k//2}, v{vQ+k//2}, s{54+(k&1)}")
        for t in range(4): A(f"v_and_b32 v{vV+4*k+t}, v{vT0}, v{vM+t}")
    A(f"s_cmp_ge_u32 s{sW}, 11")
    A("s_waitcnt vmcnt(0)")
    stamp(1)
    for k in range(8):
        A(f"v_mfma_f32_16x16x32_bf16 v[{vS}:{vS+3}], v[{vV+4*k}:{vV+4*k+3}], v[{vK+4*k}:{vK+4*k+3}], {'0' if k == 0 else f'v[{vS}:{vS+3}]'}")
    A("s_cbranch_scc1 L_W8b")
    for k in range(8, 10):
        A(f"v_mfma_f32_16x16x32_bf16 v[{vS}:{vS+3}], v[{vV+4*k}:{vV+4*k+3}], v[{vK+4*k}:{vK+4*k+3}], v[{vS}:{vS+3}]")
    A("L_W8b:")
    A(f"v_lshlrev_b32 v{vX}, 5, v{vPc}")
    A(f"v_and_b32 v{vT0}, 16, v{vL}"); A(f"v_add_u32 v{vX}, v{vX}, v{vT0}")
    A(f"v_lshrrev_b32 v{vT0}, 5, v{vL}"); A(f"v_lshl_add_u32 v{vX}, v{vT0}, 3, v{vX}")
    A(f"v_add_u32 v{vX}, s62, v{vX}")
    A("s_nop 3")
    A(f"v_permlane32_swap_b32 v{vS}, v{vS+2}"); A(f"v_permlane32_swap_b32 v{vS+1}, v{vS+3}")
    A("s_nop 1")
    A(f"v_add_f32_dpp v{vS}, v{vS+2}, v{vS} row_ror:8 {DPP}")
    A(f"v_add_f32_dpp v{vS+1}, v{vS+3}, v{vS+1} row_ror:8 {DPP}")
    A("s_mov_b32 exec_lo, 0x00ff00ff"); A("s_mov_b32 exec_hi, 0x00ff00ff")
    A(f"global_store_dwordx2 v{vX}, v[{vS}:{vS+1}], s[28:29] sc1")
    A("s_mov_b64 exec, -1")
    A("s_branch L_Bk")

    A("L_w47:")
    C("======== waves 4-7: LDS sync words, code warm-up")
    A(f"v_and_b32 v{vT0}, 15, v{vL}")
    A(f"v_cmp_eq_u32 vcc, 1, v{vT0}")
    A(f"v_mov_b32 v{vT1}, 0xff800000")
    A(f"v_lshlrev_b32 v{vT0}, 2, v{vT0}")
    A(f"v_cndmask_b32 v{vT1}, 0, v{vT1}, vcc")
    A(f"ds_write_b32 v{vT0}, v{vT1} offset:{L_SYNC}")
    L.append("@PADJUMPS@")
    A("s_waitcnt lgkmcnt(0)")
    A("s_barrier")
    kvbase()
    A("s_setprio 1")
    kvloads(6, vK)
    A("L_Av:")
    kvloads(8, vV)
    stamp(1)
    A("s_branch L_qk")
    pad()

    A("L_B13:")
    A("s_setprio 3")
    A(f"s_cmp_eq_u32 s{sW}, 13"); A("s_cbranch_scc0 L_B14")
    C("======== wave 13: clear own outboxes, signal")
    for t in range(4): A(f"v_mov_b32 v{vS+t}, -1")
    A(f"s_mul_i32 s36, s2, {QO_STRIDE}")
    A(f"v_lshl_add_u32 v{vX}, v{vL}, 4, s36")
    A(f"s_mul_i32 s36, s{sT}, {FY_STRIDE}"); A(f"s_add_u32 s36, s36, {FY_BASE}")
    A(f"v_lshl_add_u32 v{vX+1}, v{vL}, 4, s36")
    A("s_and_b32 s36, s2, 3"); A("s_lshl_b32 s36, s36, 6"); A(f"v_mov_b32 v{vX+2}, s36")
    A(f"v_mov_b32 v{vT0}, 1")
    A("s_waitcnt lgkmcnt(0)")
    A(f"global_store_dwordx4 v{vX}, v[{vS}:{vS+3}], s[28:29] sc1")
    A("s_mov_b32 exec_hi, 0xffff")
    A(f"global_store_dwordx4 v{vX+1}, v[{vS}:{vS+3}], s[28:29] sc1")
    A("s_mov_b32 exec_hi, 0xff")
    A(f"global_store_dwordx4 v{vX}, v[{vS}:{vS+3}], s[28:29] offset:1024 sc1")
    A("s_mov_b64 exec, 1")
    A("s_waitcnt vmcnt(0)")
    C("arrival counter: 4 shards, one per 64B")
    A(f"global_atomic_add v{vX+2}, v{vT0}, s[26:27] sc1")
    A("s_mov_b64 exec, -1")
    stamp(1)
    A("s_branch L_B15")

    A("L_B14:")
    A(f"s_cmp_eq_u32 s{sW}, 14"); A("s_cbranch_scc0 L_B15")
    C("======== wave 14: gate scalar g")
    A(f"v_mul_u32_u24 v{vX}, 20, v{vL}")
    A(f"v_mov_b32 v{vS}, 0")
    A("s_waitcnt lgkmcnt(0)")
    A(f"global_load_dwordx4 v[{vQ}:{vQ+3}], v{vX}, s[4:5]")
    A(f"global_load_dword v{vQ+4}, v{vX}, s[4:5] offset:16")
    A(f"global_load_dwordx4 v[{vQ+6}:{vQ+9}], v{vX}, s[22:23]")
    A(f"global_load_dword v{vQ+10}, v{vX}, s[22:23] offset:16")
    A("L_B15:")
    A("s_waitcnt lgkmcnt(0)")
    A("s_barrier")
    kvbase()
    A("L_Bk:")
    A("s_setprio 2")
    kvloads(6, vK)
    A("s_setprio 3")
    stamp(2)
    A(f"s_cmp_eq_u32 s{sW}, 13"); A("s_cbranch_scc0 L_B14b")
    C("======== wave 13: wait until every workgroup cleared, gather q")
    A(f"v_lshlrev_b32 v{vX}, 6, v{vL}")
    A("s_mov_b64 exec, 0xf")
    poll_head("L_allclr")
    A(f"global_load_dword v{vS}, v{vX}, s[26:27] sc1")
    A("s_waitcnt vmcnt(0)")
    A(f"v_cmp_gt_u32 vcc, 64, v{vS}")
    A("s_cbranch_vccnz L_allclr")
    lds_setflag(L_FALL)
    stamp(3)
    A("s_mov_b32 exec_lo, -1"); A("s_mov_b32 exec_hi, 0xffff")
    A(f"s_mul_i32 s36, s{sH}, {8*QO_STRIDE}"); A(f"s_add_u32 s36, s36, {2*QO_STRIDE}")
    A(f"v_lshl_add_u32 v{vX}, v{vL}, 4, s36")
    A(f"v_add_u32 v{vX+1}, {4*QO_STRIDE}, v{vX}")
    poll_head("L_qgather")
    for c in range(8):
        A(f"global_load_dwordx4 v[{vV+4*c}:{vV+4*c+3}], v{vX + (c>>2)}, s[28:29] offset:{((c&3)-2)*QO_STRIDE} sc1")
    A("s_waitcnt vmcnt(0)")
    poll_check(range(vV, vV+32), "L_qgather")
    for c in range(1, 8):
        for t in range(0, 4, 2): A(f"v_pk_add_f32 v[{vV+t}:{vV+t+1}], v[{vV+t}:{vV+t+1}], v[{vV+4*c+t}:{vV+4*c+t+1}]")
    A(f"v_cvt_pk_bf16_f32 v{vV}, v{vV}, v{vV+1}"); A(f"v_cvt_pk_bf16_f32 v{vV+1}, v{vV+2}, v{vV+3}")
    A(f"v_lshlrev_b32 v{vX}, 3, v{vL}")
    A(f"ds_write_b64 v{vX}, v[{vV}:{vV+1}] offset:{L_Q}")
    lds_setflag(L_FQ)
    A("s_mov_b64 exec, -1")
    A("s_branch L_qk")
    pad()

    A("L_B14b:")
    A(f"s_cmp_eq_u32 s{sW}, 14"); A("s_cbranch_scc0 L_qk")
    A("s_waitcnt vmcnt(12)")
    A(f"s_cmpk_ge_u32 s{sT}, 240"); A("s_cbranch_scc1 L_qk")
    C("======== wave 14: g; gather gate/up, h*(1-g) -> LDS")
    for k in range(5):
        A(f"v_lshlrev_b32 v{vT0}, 16, v{vQ+k}"); A(f"v_lshlrev_b32 v{vT1}, 16, v{vQ+6+k}")
        A(f"v_mul_f32 v{vT0}, v{vT0}, v{vT1}")
        A(f"v_and_b32 v{vX}, 0xffff0000, v{vQ+k}"); A(f"v_and_b32 v{vT1}, 0xffff0000, v{vQ+6+k}")
        A(f"v_mul_f32 v{vT1}, v{vX}, v{vT1}")
        A(f"v_cvt_pk_bf16_f32 v{vT0}, v{vT0}, v{vT1}")
        A(f"v_lshlrev_b32 v{vT1}, 16, v{vT0}"); A(f"v_and_b32 v{vT0}, 0xffff0000, v{vT0}")
        A(f"v_add_f32 v{vS}, v{vS}, v{vT1}"); A(f"v_add_f32 v{vS}, v{vS}, v{vT0}")
    for d in ("quad_perm:[1,0,3,2] "+DPP, "quad_perm:[2,3,0,1] "+DPP, "row_half_mirror "+DPP, "row_mirror "+DPP, BC15, BC31):
        A("s_nop 1"); A(f"v_add_f32_dpp v{vS}, v{vS}, v{vS} {d}")
    A(f"v_cvt_pk_bf16_f32 v{vS}, v{vS}, v{vS}"); A(f"v_lshlrev_b32 v{vS}, 16, v{vS}")
    A(f"v_mul_f32 v{vS}, {fbits(-1.4426950408889634)}, v{vS}")
    A(f"v_exp_f32 v{vS}, v{vS}"); A("s_nop 0")
    A(f"v_add_f32 v{vS}, 1.0, v{vS}"); A(f"v_rcp_f32 v{vS}, v{vS}"); A("s_nop 0")
    A(f"v_cvt_pk_bf16_f32 v{vS}, v{vS}, v{vS}"); A(f"v_lshlrev_b32 v{vS}, 16, v{vS}")
    A(f"v_sub_f32 v{vS+1}, 1.0, v{vS}")
    A(f"v_cvt_pk_bf16_f32 v{vS+1}, v{vS+1}, v{vS+1}"); A(f"v_lshlrev_b32 v{vS+1}, 16, v{vS+1}")
    A("s_nop 0")
    A(f"v_readlane_b32 s60, v{vS}, 63"); A(f"v_readlane_b32 s61, v{vS+1}, 63")
    lds_spin(L_FALL, 1)
    A(f"s_mul_i32 s36, s{sJ}, {10*FY_STRIDE}"); A(f"s_add_u32 s36, s36, {FY_BASE + 4*FY_STRIDE}")
    A(f"v_and_b32 v{vT0}, 31, v{vL}"); A(f"v_lshl_add_u32 v{vX}, v{vT0}, 4, s36")
    A(f"v_lshrrev_b32 v{vT0}, 5, v{vL}"); A(f"v_mul_u32_u24 v{vT0}, {FY_STRIDE}, v{vT0}"); A(f"v_add_u32 v{vX}, v{vX}, v{vT0}")
    poll_head("L_fgather")
    for i in range(5):
        A(f"global_load_dwordx4 v[{vV+4*i}:{vV+4*i+3}], v{vX}, s[28:29] offset:{(i-2)*2*FY_STRIDE} sc1")
    A("s_waitcnt vmcnt(0)")
    poll_check(range(vV, vV+20), "L_fgather")
    for i in range(1, 5):
        for t in range(0, 4, 2): A(f"v_pk_add_f32 v[{vV+t}:{vV+t+1}], v[{vV+t}:{vV+t+1}], v[{vV+4*i+t}:{vV+4*i+t+1}]")
    A("s_nop 1")
    A(f"v_permlane32_swap_b32 v{vV}, v{vV+2}"); A(f"v_permlane32_swap_b32 v{vV+1}, v{vV+3}")
    A(f"v_add_f32 v{vV}, v{vV}, v{vV+2}"); A(f"v_add_f32 v{vV+1}, v{vV+1}, v{vV+3}")
    A("s_nop 1")
    A(f"v_permlane16_swap_b32 v{vV}, v{vV+1}")
    C("gate=vV, up=vV+1 for f = 4*(l&15) + (l>>4)")
    A(f"v_cvt_pk_bf16_f32 v{vV}, v{vV}, v{vV+1}")
    A(f"v_and_b32 v{vV+1}, 0xffff0000, v{vV}"); A(f"v_lshlrev_b32 v{vV}, 16, v{vV}")
    A(f"v_mul_f32 v{vT0}, {fbits(-1.4426950408889634)}, v{vV}")
    A(f"v_exp_f32 v{vT0}, v{vT0}"); A("s_nop 0")
    A(f"v_add_f32 v{vT0}, 1.0, v{vT0}"); A(f"v_rcp_f32 v{vT0}, v{vT0}"); A("s_nop 0")
    A(f"v_mul_f32 v{vV}, v{vV}, v{vT0}")
    A(f"v_cvt_pk_bf16_f32 v{vV}, v{vV}, v{vV}"); A(f"v_lshlrev_b32 v{vV}, 16, v{vV}")
    A(f"v_mul_f32 v{vV}, v{vV}, v{vV+1}")
    A(f"v_cvt_pk_bf16_f32 v{vV}, v{vV}, v{vV}"); A(f"v_lshlrev_b32 v{vV}, 16, v{vV}")
    A(f"v_mul_f32 v{vV}, s61, v{vV}")
    A(f"v_cvt_pk_bf16_f32 v{vV}, v{vV}, v{vV}")
    A(f"v_and_b32 v{vT0}, 15, v{vL}"); A(f"v_lshlrev_b32 v{vT0}, 4, v{vT0}")
    A(f"v_lshrrev_b32 v{vT1}, 4, v{vL}"); A(f"v_lshl_add_u32 v{vT0}, v{vT1}, 2, v{vT0}")
    A(f"ds_write_b32 v{vT0}, v{vV} offset:{L_HW}")
    A(f"v_mov_b32 v{vT0}, 1"); A(f"v_mov_b32 v{vT1}, s60")
    A(f"ds_write_b64 v{vZ}, v[{vT0}:{vT1}] offset:{L_FH}")

    A("L_qk:")
    lds_spin(L_FQ, 1, dopad=True)
    stamp(4)
    A(f"v_lshlrev_b32 v{vX}, 4, v{vPc}")
    for j in range(3): A(f"ds_read_b128 v[{vQ+4*j}:{vQ+4*j+3}], v{vX} offset:{L_Q + 128*j}")
    for g in range(4): A(f"v_mov_b32 v{vS+g}, 0")
    A("s_waitcnt vmcnt(12) lgkmcnt(0)")
    A(f"s_cmp_ge_u32 s{sW}, 8"); A("s_cbranch_scc0 L_qk2")
    A("s_waitcnt vmcnt(0)")
    A("L_qk2:")
    for j in range(3):
        for t in range(4):
            for g in range(4):
                A(f"v_dot2c_f32_bf16 v{vS+g}, v{vK+4*(3*g+j)+t}, v{vQ+4*j+t}")
    for d in ("quad_perm:[1,0,3,2]", "quad_perm:[2,3,0,1]", "row_half_mirror"):
        for g in range(4): A(f"v_add_f32_dpp v{vS+g}, v{vS+g}, v{vS+g} {d} {DPP}")
    A(f"s_mov_b32 s37, {fbits(SCALE)}")
    A(f"v_max3_f32 v{vT0}, v{vS}, v{vS+1}, v{vS+2}"); A(f"v_max_f32 v{vT0}, v{vT0}, v{vS+3}")
    for d in ("row_ror:8 "+DPP, BC15, BC31):
        A("s_nop 1"); A(f"v_max_f32_dpp v{vT0}, v{vT0}, v{vT0} {d}")
    A(f"v_mul_f32 v{vX}, s37, v{vT0}")
    A("s_nop 0")
    A(f"v_readlane_b32 s56, v{vX}, 63")
    A(f"v_mov_b32 v{vT1}, s37")
    A("s_nop 0")
    for g in range(4): A(f"v_fma_f32 v{vS+g}, v{vS+g}, v{vT1}, -s56")
    for g in range(4): A(f"v_exp_f32 v{vS+g}, v{vS+g}")
    A(f"v_add_f32 v{vX+1}, v{vS}, v{vS+1}"); A(f"v_add_f32 v{vT0}, v{vS+2}, v{vS+3}"); A(f"v_add_f32 v{vX+1}, v{vX+1}, v{vT0}")
    for d in ("row_ror:8 "+DPP, BC15, BC31):
        A("s_nop 1"); A(f"v_add_f32_dpp v{vX+1}, v{vX+1}, v{vX+1} {d}")
    C("lane 63 posts (m_w, l_w), max, arrival")
    A(f"s_lshl_b32 s36, s{sW}, 3"); A(f"v_mov_b32 v{vT0}, s36"); A(f"v_mov_b32 v{vT1}, 1")
    A("s_mov_b32 exec_lo, 0"); A("s_mov_b32 exec_hi, 0x80000000")
    A(f"ds_write_b64 v{vT0}, v[{vX}:{vX+1}] offset:{L_TAB}")
    A(f"ds_max_f32 v{vZ}, v{vX} offset:{L_MC}")
    A(f"ds_add_rtn_u32 v{vT0}, v{vZ}, v{vT1} offset:{L_CNTM}")
    A("s_waitcnt lgkmcnt(0)")
    A(f"v_readfirstlane_b32 s36, v{vT0}")
    A("s_mov_b64 exec, -1")
    A("s_cmp_eq_u32 s36, 15"); A("s_cbranch_scc0 L_noml")
    C("last arriver publishes (m_c, l_c)")
    A(f"v_and_b32 v{vT0}, 15, v{vL}"); A(f"v_lshlrev_b32 v{vT0}, 3, v{vT0}")
    A(f"ds_read_b64 v[{vX}:{vX+1}], v{vT0} offset:{L_TAB}")
    A(f"ds_read_b32 v{vX+2}, v{vZ} offset:{L_MC}")
    A(f"s_mul_i32 s36, s2, {QO_STRIDE}"); A(f"v_mov_b32 v{vT0}, s36")
    A("s_waitcnt lgkmcnt(0)")
    A(f"v_sub_f32 v{vX}, v{vX}, v{vX+2}"); A(f"v_exp_f32 v{vX}, v{vX}"); A("s_nop 0")
    A(f"v_mul_f32 v{vX+3}, v{vX}, v{vX+1}")
    for d in ("quad_perm:[1,0,3,2]", "quad_perm:[2,3,0,1]", "row_half_mirror", "row_mirror"):
        A("s_nop 1"); A(f"v_add_f32_dpp v{vX+3}, v{vX+3}, v{vX+3} {d} {DPP}")
    A("s_mov_b64 exec, 1")
    A("s_setprio 3")
    A(f"global_store_dwordx2 v{vT0}, v[{vX+2}:{vX+3}], s[28:29] offset:1536 sc1")
    A("s_mov_b64 exec, -1")
    A("L_noml:")
    A(f"s_cmp_ge_u32 s{sW}, 8"); A("s_cbranch_scc0 L_pv")
    A("s_setprio 1")
    kvloads(8, vV)
    A("L_pv:")
    A("s_setprio 3")
    stamp(5)
    lds_spin(L_CNTM, 16, b64=True, dopad=True)
    A(f"v_sub_f32 v{vT0}, s56, v{vT1}"); A(f"v_exp_f32 v{vT0}, v{vT0}")
    vA = vK; vD = vK+16
    A(f"s_and_b32 s37, s{sW}, 3"); A("s_mul_i32 s38, s37, 3072")
    for g in range(4): A(f"v_mul_f32 v{vS+g}, v{vS+g}, v{vT0}")
    for g in range(4): A(f"v_cvt_pk_bf16_f32 v{vS+g}, v{vS+g}, v{vS+g}")
    for g in range(4):
        for t in range(4): A(f"v_and_b32 v{vA+4*g+t}, v{vS+g}, v{vM+t}")
    A(f"v_lshl_add_u32 v{vX}, v{vL}, 4, s38")
    A("s_lshl_b32 s37, s37, 2"); A(f"v_mov_b32 v{vX+1}, s37")
    for r in range(12): A(f"v_mov_b32 v{vD+r}, 0")
    C("reader address for the final o reduction")
    A(f"v_and_b32 v{vT0}, 1, v{vL}"); A(f"v_lshlrev_b32 v{vX+2}, 8, v{vT0}")
    A(f"v_bfe_u32 v{vT0}, v{vL}, 1, 3"); A(f"v_lshl_add_u32 v{vX+2}, v{vT0}, 4, v{vX+2}")
    A(f"v_lshrrev_b32 v{vT0}, 4, v{vL}"); A(f"v_lshl_add_u32 v{vX+3}, v{vT0}, 10, v{vX+2}")
    A(f"s_mul_i32 s38, s2, {QO_STRIDE}"); A(f"v_lshl_add_u32 v{vQ+2}, v{vL}, 4, s38")
    A(f"s_lshr_b32 s57, s{sW}, 2"); A("s_cbranch_scc0 L_pv0")
    lds_spin(L_STG, "s57", addr=vX+1)
    for j in range(3): A(f"ds_read_b128 v[{vD+4*j}:{vD+4*j+3}], v{vX} offset:{L_CH + 1024*j}")
    A("s_waitcnt lgkmcnt(0)")
    A("L_pv0:")
    A(f"v_mov_b32 v{vT1}, 1")
    for g in range(4):
        for j in range(3):
            A(f"s_waitcnt vmcnt({11-3*g-j})")
            A(f"v_mfma_f32_16x16x32_bf16 v[{vD+4*j}:{vD+4*j+3}], v[{vA+4*g}:{vA+4*g+3}], v[{vV+4*(3*g+j)}:{vV+4*(3*g+j)+3}], v[{vD+4*j}:{vD+4*j+3}]")
    stamp(6)
    A("s_nop 3")
    A(f"ds_write_b128 v{vX}, v[{vD}:{vD+3}] offset:{L_CH}")
    A("s_nop 0")
    A(f"ds_write_b128 v{vX}, v[{vD+4}:{vD+7}] offset:{L_CH+1024}")
    A("s_nop 0")
    A(f"ds_write_b128 v{vX}, v[{vD+8}:{vD+11}] offset:{L_CH+2048}")
    A("s_mov_b64 exec, 1")
    A(f"ds_add_u32 v{vX+1}, v{vT1} offset:{L_STG}")
    A(f"ds_add_rtn_u32 v{vT0}, v{vZ}, v{vT1} offset:{L_CNTO}")
    A("s_mov_b32 exec_lo, -1"); A("s_mov_b32 exec_hi, 0xffff")
    A("s_waitcnt lgkmcnt(0)")
    A(f"v_readfirstlane_b32 s36, v{vT0}")
    A("s_cmp_eq_u32 s36, 15"); A("s_cbranch_scc0 L_noo")
    C("last arriver publishes o partial")
    for i in range(8): A(f"ds_read_b128 v[{vV+4*i}:{vV+4*i+3}], v{vX+3} offset:{L_CH + 3072*(i>>1) + 640*(i&1)}")
    for i in range(1, 8):
        A(f"s_waitcnt lgkmcnt({7-i})")
        for t in range(0, 4, 2): A(f"v_pk_add_f32 v[{vV+t}:{vV+t+1}], v[{vV+t}:{vV+t+1}], v[{vV+4*i+t}:{vV+4*i+t+1}]")
    A(f"global_store_dwordx4 v{vQ+2}, v[{vV}:{vV+3}], s[28:29] offset:768 sc1")
    A("L_noo:")
    A("s_mov_b64 exec, -1")
    stamp(7)
    A(f"s_cmp_ge_u32 s{sW}, 8"); A("s_cbranch_scc1 L_end")
    A(f"s_cmpk_ge_u32 s{sT}, 240"); A("s_cbranch_scc1 L_final")

    C("======== tail tile: y = scale*o . wo[32 rows] + h . w2[8 rows]")
    vW = vV+4; vO = vK; vML = vK+4; vA2 = vK+8; vY = vK+24; vR = vK+28
    vAo, vAml, vAw2, vAwo, vAys, vAyr, vAyp, vG = vQ, vQ+1, vQ+3, vQ+4, vQ+5, vQ+6, vQ+7, vQ+8
    A(f"s_lshl_b32 s36, s{sJ}, 3"); A(f"s_add_u32 s36, s36, s{sW}")
    A("s_mul_i32 s37, s36, 43691"); A("s_lshr_b32 s37, s37, 18")
    A("s_mul_i32 s38, s37, 6"); A("s_sub_u32 s38, s36, s38")
    A(f"s_mul_i32 s37, s37, {8*QO_STRIDE}")
    A(f"v_mul_u32_u24 v{vAml}, {QO_STRIDE}, v{vPc}"); A(f"v_add_u32 v{vAml}, s37, v{vAml}")
    A("s_lshl_b32 s38, s38, 7"); A(f"v_lshl_add_u32 v{vAo}, v{vOct}, 4, s38"); A(f"v_add_u32 v{vAo}, v{vAo}, v{vAml}")
    A(f"s_lshl_b32 s39, s{sS}, 7")
    A(f"s_mul_i32 s37, s36, {32*1280}"); A("s_add_u32 s37, s37, s39"); A("s_add_u32 s12, s12, s37"); A("s_addc_u32 s13, s13, 0")
    A(f"s_mul_i32 s37, s36, {8*1280}"); A("s_add_u32 s37, s37, s39"); A("s_add_u32 s20, s20, s37"); A("s_addc_u32 s21, s21, 0")
    A(f"v_mul_u32_u24 v{vT0}, 1280, v{vOct}"); A(f"v_lshl_add_u32 v{vAw2}, v{vPc}, 4, v{vT0}")
    A(f"v_lshlrev_b32 v{vT0}, 2, v{vT0}"); A(f"v_lshl_add_u32 v{vAwo}, v{vPc}, 4, v{vT0}")
    A(f"s_lshl_b32 s37, s{sW}, 10"); A(f"v_lshl_add_u32 v{vAys}, v{vL}, 4, s37")
    A(f"v_lshrrev_b32 v{vT0}, 4, v{vL}"); A(f"v_lshl_add_u32 v{vAyr}, v{vT0}, 11, v{vX+2}")
    A(f"s_mul_i32 s37, s{sT}, {FY_STRIDE}"); A(f"s_add_u32 s37, s37, {FY_BASE+512}")
    A(f"v_lshl_add_u32 v{vAyp}, v{vT0}, 2, s37"); A(f"v_and_b32 v{vT0}, 15, v{vL}"); A(f"v_lshl_add_u32 v{vAyp}, v{vT0}, 4, v{vAyp}")
    lds_spin(L_FH, 1, b64=True, dopad=True)
    A(f"v_mov_b32 v{vG}, v{vT1}")
    A(f"s_lshl_b32 s36, s{sW}, 5"); A(f"v_lshl_add_u32 v{vT0}, v{vOct}, 2, s36")
    A(f"ds_read_b32 v{vS}, v{vT0} offset:{L_HW}")
    A("s_setprio 0")
    A(f"global_load_dwordx4 v[{vW+16}:{vW+19}], v{vAw2}, s[20:21] {o['wnt']}")
    for t in range(4):
        A("s_nop 0")
        A(f"global_load_dwordx4 v[{vW+4*t}:{vW+4*t+3}], v{vAwo}, s[12:13] offset:{1280*t} {o['wnt']}")
    A("s_setprio 3")
    poll_head("L_mlpoll")
    A(f"global_load_dwordx2 v[{vML}:{vML+1}], v{vAml}, s[28:29] offset:1536 sc1")
    A("s_waitcnt vmcnt(0) lgkmcnt(0)")
    poll_check([vML, vML+1], "L_mlpoll")
    stamp(8)
    A(f"global_load_dwordx4 v[{vO}:{vO+3}], v{vAo}, s[28:29] offset:768 sc1")
    for t in range(4): A(f"v_and_b32 v{vA2+t}, v{vS}, v{vM+t}")
    A(f"v_mov_b32 v{vT0}, v{vML}")
    A("s_nop 0")
    A(f"v_mfma_f32_16x16x32_bf16 v[{vY}:{vY+3}], v[{vA2}:{vA2+3}], v[{vW+16}:{vW+19}], 0")
    for d in ("quad_perm:[1,0,3,2]", "quad_perm:[2,3,0,1]", "row_half_mirror"):
        A(f"v_max_f32_dpp v{vT0}, v{vT0}, v{vT0} {d} {DPP}"); A("s_nop 1")
    A(f"v_sub_f32 v{vT0}, v{vML}, v{vT0}"); A(f"v_exp_f32 v{vT0}, v{vT0}"); A("s_nop 0")
    A(f"v_mul_f32 v{vT1}, v{vT0}, v{vML+1}")
    for d in ("quad_perm:[1,0,3,2]", "quad_perm:[2,3,0,1]", "row_half_mirror"):
        A("s_nop 1"); A(f"v_add_f32_dpp v{vT1}, v{vT1}, v{vT1} {d} {DPP}")
    A(f"v_rcp_f32 v{vT1}, v{vT1}"); A(f"v_mul_f32 v{vT0}, v{vT0}, v{vG}")
    A(f"v_mul_f32 v{vS+1}, v{vT0}, v{vT1}")
    A(f"v_mov_b32 v{vT1}, 1")
    A("s_branch L_owait")
    poll_head("L_opoll")
    A(f"global_load_dwordx4 v[{vO}:{vO+3}], v{vAo}, s[28:29] offset:768 sc1")
    A("L_owait:")
    A("s_waitcnt vmcnt(0)")
    poll_check(range(vO, vO+4), "L_opoll")
    stamp(9)
    for t in range(4): A(f"v_mul_f32 v{vO+t}, v{vO+t}, v{vS+1}")
    for d in ("quad_perm:[1,0,3,2]", "quad_perm:[2,3,0,1]", "row_half_mirror"):
        for t in range(4): A(f"v_add_f32_dpp v{vO+t}, v{vO+t}, v{vO+t} {d} {DPP}")
    for t in range(4): A(f"v_cvt_pk_bf16_f32 v{vO+t}, v{vO+t}, v{vO+t}")
    for k in range(4): A(f"v_and_b32 v{vA2+k}, v{vO}, v{vM+k}")
    for t in range(4):
        if t < 3:
            for k in range(4): A(f"v_and_b32 v{vA2+4*(t+1)+k}, v{vO+t+1}, v{vM+k}")
        else:
            A("s_nop 0")
        A(f"v_mfma_f32_16x16x32_bf16 v[{vY}:{vY+3}], v[{vA2+4*t}:{vA2+4*t+3}], v[{vW+4*t}:{vW+4*t+3}], v[{vY}:{vY+3}]")
    A("s_nop 7")
    A(f"ds_write_b128 v{vAys}, v[{vY}:{vY+3}] offset:{L_Y}")
    A("s_mov_b64 exec, 1")
    A(f"ds_add_rtn_u32 v{vT0}, v{vZ}, v{vT1} offset:{L_CNTY}")
    A("s_mov_b64 exec, -1")
    A("s_waitcnt lgkmcnt(0)")
    A(f"v_readfirstlane_b32 s36, v{vT0}")
    A("s_cmp_eq_u32 s36, 7"); A("s_cbranch_scc0 L_end")
    for i in range(4): A(f"ds_read_b128 v[{vR+4*i}:{vR+4*i+3}], v{vAyr} offset:{L_Y + 1024*(i>>1) + 640*(i&1)}")
    for i in range(1, 4):
        A(f"s_waitcnt lgkmcnt({3-i})")
        for t in range(0, 4, 2): A(f"v_pk_add_f32 v[{vR+t}:{vR+t+1}], v[{vR+t}:{vR+t+1}], v[{vR+4*i+t}:{vR+4*i+t+1}]")
    A("s_nop 1")
    A(f"v_permlane32_swap_b32 v{vR}, v{vR+2}"); A(f"v_permlane32_swap_b32 v{vR+1}, v{vR+3}")
    A(f"v_pk_add_f32 v[{vR}:{vR+1}], v[{vR}:{vR+1}], v[{vR+2}:{vR+3}]")
    A("s_nop 1")
    A(f"v_permlane16_swap_b32 v{vR}, v{vR+1}")
    A(f"v_add_f32 v{vR}, v{vR}, v{vR+1}")
    A(f"global_store_dword v{vAyp}, v{vR}, s[28:29] sc1")
    A("s_branch L_end")
    pad()

    A("L_final:")
    A(f"s_cmp_ge_u32 s{sW}, 5"); A("s_cbranch_scc1 L_end")
    A(f"s_sub_u32 s36, s{sT}, 240"); A("s_mul_i32 s36, s36, 5"); A(f"s_add_u32 s36, s36, s{sW}")
    A("s_lshr_b32 s37, s36, 3"); A(f"s_mul_i32 s37, s37, {FY_STRIDE}"); A("s_and_b32 s38, s36, 7"); A("s_lshl_b32 s38, s38, 5")
    A("s_add_u32 s37, s37, s38"); A(f"s_add_u32 s37, s37, {FY_BASE + 512}")
    A(f"v_lshrrev_b32 v{vT0}, 1, v{vL}"); A(f"v_mul_u32_u24 v{vX+1}, {10*FY_STRIDE}, v{vT0}")
    A(f"v_and_b32 v{vT0}, 1, v{vL}"); A(f"v_lshl_add_u32 v{vX+1}, v{vT0}, 4, v{vX+1}"); A(f"v_add_u32 v{vX+1}, s37, v{vX+1}")
    A("s_lshl_b32 s36, s36, 4"); A(f"v_lshl_add_u32 v{vX+2}, v{vT0}, 3, s36")
    A(f"v_lshrrev_b32 v{vT0}, 4, v{vL}"); A(f"v_lshl_add_u32 v{vX+2}, v{vT0}, 1, v{vX+2}")
    for t in range(4): A(f"v_mov_b32 v{vS+t}, 0")
    A("s_mov_b32 exec_hi, 0xffff")
    poll_head("L_ypoll")
    A(f"global_load_dwordx4 v[{vS}:{vS+3}], v{vX+1}, s[28:29] sc1")
    A("s_waitcnt vmcnt(0)")
    poll_check(range(vS, vS+4), "L_ypoll")
    stamp(9)
    A("s_mov_b64 exec, -1")
    A(f"v_permlane32_swap_b32 v{vS}, v{vS+2}"); A(f"v_permlane32_swap_b32 v{vS+1}, v{vS+3}")
    A(f"v_pk_add_f32 v[{vS}:{vS+1}], v[{vS}:{vS+1}], v[{vS+2}:{vS+3}]")
    A("s_nop 1")
    A(f"v_permlane16_swap_b32 v{vS}, v{vS+1}")
    A(f"v_add_f32 v{vS}, v{vS}, v{vS+1}")
    for d in ("row_ror:8", "row_ror:4", "row_ror:2"):
        A("s_nop 1"); A(f"v_add_f32_dpp v{vS}, v{vS}, v{vS} {d} {DPP}")
    A(f"v_cvt_pk_bf16_f32 v{vS}, v{vS}, v{vS}")
    A("s_mov_b32 exec_lo, 0x00030003"); A("s_mov_b32 exec_hi, 0x00030003")
    A(f"global_store_short v{vX+2}, v{vS}, s[24:25]")

    A("L_end:")
    if o.get("pin"):
        A("s_waitcnt vmcnt(0)")
        A("L_pin:")
        A("s_memrealtime s[82:83]"); A("s_waitcnt lgkmcnt(0)")
        A("s_sub_u32 s82, s82, s80"); A(f"s_cmp_lt_u32 s82, {o['pin']}"); A("s_cbranch_scc1 L_pin")
    if diag:
        A("s_waitcnt vmcnt(0)")
        A("s_memrealtime s[100:101]")
        A("s_mov_b64 exec, 1")
        A("s_waitcnt lgkmcnt(0)")
        C("hold the stamp stores back until the kernel proper is over")
        A("L_hold:")
        A("s_memrealtime s[40:41]"); A("s_waitcnt lgkmcnt(0)")
        A("s_sub_u32 s40, s40, s80"); A("s_cmp_lt_u32 s40, 4000"); A("s_sleep 8"); A("s_cbranch_scc1 L_hold")
        A("s_add_u32 s28, s28, 0x40000000"); A("s_addc_u32 s29, s29, 0")
        A(f"s_lshl_b32 s36, s2, 4"); A(f"s_add_u32 s36, s36, s{sW}"); A("s_mul_i32 s36, s36, 88")
        A(f"v_mov_b32 v{vT0}, s36")
        for i in range(11):
            A(f"v_mov_b32 v{vS}, s{80+2*i}"); A(f"v_mov_b32 v{vS+1}, s{81+2*i}")
            A(f"global_store_dwordx2 v{vT0}, v[{vS}:{vS+1}], s[28:29] offset:{8*i}")
            A("s_waitcnt vmcnt(0)")
    A("L_exit:")
    A("s_endpgm")
    pj = []
    for i in pads:
        pj.append(f"    s_cmp_eq_u32 s{sW}, {4 + i % 4}")
        pj.append(f"    s_cbranch_scc1 L_pad{i}")
        pj.append(f"L_padret{i}:")
    L[L.index("@PADJUMPS@")] = "\n".join(pj)
    L.append('.section .rodata,"a"'); L.append(".p2align 6"); L.append(f".amdhsa_kernel {KN}")
    L.append("  .amdhsa_next_free_vgpr 128"); L.append("  .amdhsa_next_free_sgpr 102"); L.append("  .amdhsa_accum_offset 128")
    L.append("  .amdhsa_group_segment_fixed_size 0"); L.append("  .amdhsa_kernarg_size 104"); L.append("  .amdhsa_user_sgpr_count 2")
    L.append("  .amdhsa_user_sgpr_kernarg_segment_ptr 1"); L.append("  .amdhsa_system_sgpr_workgroup_id_x 1"); L.append(".end_amdhsa_kernel")
    open(path, "w").write("\n".join(L)+"\n")

if __name__ == "__main__":
    gen("v2.s")
    gen("v2_diag.s", diag=True)
    gen("v2_diag_b3.s", diag=True, opts=dict(burst=3))
    gen("v2_diag_nopad.s", diag=True, opts=dict(pads=False))
```
